```python
import torch

def _softmax(x, axis=-1):
    return torch.softmax(x, dim=axis)
def _gelu(x):
    return torch.nn.functional.gelu(x, approximate="tanh")
def _silu(x):
    return torch.nn.functional.silu(x)
def _sigmoid(x):
    return torch.sigmoid(x)
def _layernorm(x, axis=-1, eps=1e-5):
    m = x.mean(dim=axis, keepdim=True)
    v = x.var(dim=axis, keepdim=True, unbiased=False)
    return (x - m) / torch.sqrt(v + eps)
def _scatter_add(tgt, idx, src, axis=0):
    return tgt.clone().index_add_(axis, idx, src)
def _segment_sum(src, seg, n):
    out = torch.zeros((n,) + src.shape[1:], dtype=src.dtype)
    return out.index_add_(0, seg, src)
def _pad(x, pw):
    flat = tuple(v for pair in reversed(pw) for v in pair)
    return torch.nn.functional.pad(x, flat)

kernel_name = 'gated_mix__softmax_full_mha__dense_activation_mish__prompt'

def setup_inputs():

    _w = (lambda a: (lambda t: t.to(torch.bfloat16) if t.is_floating_point() else t)(torch.as_tensor(a)))
    def _A_setup():
        B, S, D = 1, 2048, 448
        return {
            "x": _w((lambda *s: torch.randn(*s, dtype=torch.bfloat16) * 0.05)(B, S, D)),
            "wqkv": _w((lambda *s: torch.randn(*s, dtype=torch.bfloat16) * 0.8)(D, 3 * D)),
            "wo": _w((lambda *s: torch.randn(*s, dtype=torch.bfloat16) * 0.05)(D, D)),
        }
    _A_in = _A_setup()

    def _B_setup():
        B, S, D, F = 1, 2048, 448, 1792
        return {
            "x": _w((lambda *s: torch.randn(*s, dtype=torch.bfloat16) * 0.05)(B, S, D)),
            "w1": _w((lambda *s: torch.randn(*s, dtype=torch.bfloat16) * 12.8)(D, F) * (D ** -0.5)),
            "b1": _w((lambda *s: torch.randn(*s, dtype=torch.bfloat16) * 0.1)(F)),
            "w2": _w((lambda *s: torch.randn(*s, dtype=torch.bfloat16) * 0.1)(F, D) * (F ** -0.5)),
        }
    _B_in = _B_setup()

    return {
        "A_x": _A_in["x"],
        "A_wqkv": _A_in["wqkv"],
        "A_wo": _A_in["wo"],
        "B_x": _B_in["x"],
        "B_w1": _B_in["w1"],
        "B_b1": _B_in["b1"],
        "B_w2": _B_in["w2"],
        "gate_w": _w((lambda *s: torch.randn(*s, dtype=torch.bfloat16) * 0.05)(448) * 16.0),
    }

def reference(A_x, A_wqkv, A_wo, B_x, B_w1, B_b1, B_w2, gate_w):
    def _A_ref(x, wqkv, wo):
        B, S, D = x.shape
        H = 16; Dh = D // H
        qkv = (lambda x, *d: x.permute(*d))((x @ wqkv).reshape(B, S, 3, H, Dh), 2, 0, 3, 1, 4)
        q, k, v = qkv[0], qkv[1], qkv[2]
        scale = Dh ** -0.5
        scores = torch.einsum("bhqd,bhkd->bhqk", q, k) * scale
        p = _softmax(scores, axis=-1)
        o = torch.einsum("bhqk,bhkd->bhqd", p, v)
        return (lambda x, *d: x.permute(*d))(o, 0, 2, 1, 3).reshape(B, S, D) @ wo

    def _B_ref(x, w1, b1, w2):
        h = torch.einsum("bsd,df->bsf", x, w1) + b1
        sp = torch.log1p(torch.exp(-torch.abs(h))) + torch.where(h > 0, h, torch.zeros_like(h))
        act = h * torch.tanh(sp)
        return torch.einsum("bsf,fd->bsd", act, w2)

    x = A_x
    g = _sigmoid((x * gate_w).sum(-1, keepdims=True))
    a = _A_ref(x, A_wqkv, A_wo)
    b = _B_ref(x, B_w1, B_b1, B_w2)
    return g * a + (1 - g) * b
```

```python
import re

class Tok:
    __slots__ = ("idx", "kind")
    def __init__(self, kind):
        self.idx = None
        self.kind = kind

class Op:
    __slots__ = ("kind", "text", "tok", "vm", "lg", "cost")
    def __init__(self, kind, text="", tok=None, vm=None, lg=None, cost=4):
        self.kind = kind; self.text = text; self.tok = tok
        self.vm = vm or []; self.lg = lg or []; self.cost = cost

TRANS = ("v_exp_f32", "v_rcp_f32", "v_log_f32", "v_rsq_f32", "v_sqrt_f32", "v_rcp_iflag_f32")

def cost_of(text):
    n = text.split()[0]
    if n.startswith("v_mfma"): return 8
    if n.replace("_e32", "").replace("_e64", "") in TRANS: return 8
    return 4

def I(text): return Op('i', text, cost=cost_of(text))
def VM(text):
    return Op('vm', text, tok=Tok('vm'), cost=8)
def LG(text):
    return Op('lg', text, tok=Tok('lg'), cost=4)
def W(vm=None, lg=None):
    def norm(x):
        if x is None: return []
        if isinstance(x, (Op, Tok)): x = [x]
        return [t.tok if isinstance(t, Op) else t for t in x]
    return Op('wait', vm=norm(vm), lg=norm(lg))
def DRAIN(vm=True, lg=True):
    return Op('drain', text=("v" if vm else "") + ("l" if lg else ""))
def L(name): return Op('label', name, cost=0)
def RAW(text): return Op('raw', text, cost=0)
def FORK(): return Op('fork', cost=0)
def ALT(): return Op('alt', cost=0)
def JOIN(): return Op('join', cost=0)
def ASSUME_DRAINED(vm=True, lg=True):
    return Op('assume', text=("v" if vm else "") + ("l" if lg else ""), cost=0)

def flat(x):
    out = []
    def rec(y):
        if y is None: return
        if isinstance(y, Op): out.append(y)
        elif isinstance(y, str): out.append(I(y))
        else:
            for z in y: rec(z)
    rec(x)
    return out

def finalize(ops):
    out = []
    st = dict(vi=0, vd=0, li=0, ld=0)
    stack = []
    for op in ops:
        k = op.kind
        if k == 'i':
            out.append(('i', op.text))
        elif k == 'vm':
            op.tok.idx = st['vi']; st['vi'] += 1
            out.append(('i', op.text))
        elif k == 'lg':
            op.tok.idx = st['li']; st['li'] += 1
            out.append(('i', op.text))
        elif k == 'wait':
            parts = []
            if op.vm:
                for t in op.vm: assert t.idx is not None, "wait on unissued vm token"
                need = max(t.idx for t in op.vm) + 1
                if need > st['vd']:
                    n = min(st['vi'] - need, 63)
                    parts.append(f"vmcnt({n})"); st['vd'] = st['vi'] - n
            if op.lg:
                for t in op.lg: assert t.idx is not None, "wait on unissued lg token"
                need = max(t.idx for t in op.lg) + 1
                if need > st['ld']:
                    n = min(st['li'] - need, 15)
                    parts.append(f"lgkmcnt({n})"); st['ld'] = st['li'] - n
            if parts: out.append(('i', "s_waitcnt " + " ".join(parts)))
        elif k == 'drain':
            parts = []
            if 'v' in op.text: parts.append("vmcnt(0)"); st['vd'] = st['vi']
            if 'l' in op.text: parts.append("lgkmcnt(0)"); st['ld'] = st['li']
            out.append(('i', "s_waitcnt " + " ".join(parts)))
        elif k == 'assume':
            if 'v' in op.text: st['vd'] = st['vi']
            if 'l' in op.text: st['ld'] = st['li']
            out.append(('assume', op.text))
        elif k == 'label':
            out.append(('label', op.text))
        elif k == 'raw':
            out.append(('raw', op.text))
        elif k == 'fork':
            stack.append([dict(st), None]); out.append(('fork', ''))
        elif k == 'alt':
            stack[-1][1] = dict(st); st = dict(stack[-1][0]); out.append(('alt', ''))
        elif k == 'join':
            s0, s1 = stack.pop()
            assert s1['vi'] == st['vi'] and s1['li'] == st['li'], ("alt paths differ", s1, st)
            st['vd'] = min(st['vd'], s1['vd']); st['ld'] = min(st['ld'], s1['ld'])
            out.append(('join', ''))
        else:
            raise ValueError(k)
    return out

_reg = re.compile(r"^(-?)(?:abs\()?\|?([vas])(?:(\d+)|\[(\d+):(\d+)\])\|?\)?$")
def regs_of(tok):
    tok = tok.strip()
    if tok in ("vcc",): return [('s', 106), ('s', 107)]
    if tok in ("vcc_lo",): return [('s', 106)]
    if tok in ("vcc_hi",): return [('s', 107)]
    if tok == "exec": return [('s', 126), ('s', 127)]
    if tok == "m0": return [('s', 124)]
    m = _reg.match(tok)
    if not m: return []
    f = m.group(2)
    if m.group(3) is not None: return [(f, int(m.group(3)))]
    return [(f, i) for i in range(int(m.group(4)), int(m.group(5)) + 1)]

class PI:
    __slots__ = ("name", "cls", "rd", "wr", "srcA", "srcB", "srcC", "trans", "states", "text", "dma", "wide_store", "ld_dst", "cnt", "sread_const", "dpp")

def parse(text):
    p = PI(); p.text = text
    body = text.split(";")[0].strip()
    parts = body.split(None, 1)
    name = parts[0]; p.name = name
    rest = parts[1] if len(parts) > 1 else ""
    opsx = [o.strip() for o in rest.split(",")] if rest else []
    mods = ""
    if opsx:
        sp = opsx[-1].split(None, 1)
        opsx[-1] = sp[0]
        mods = sp[1] if len(sp) > 1 else ""
    p.rd = []; p.wr = []; p.srcA = p.srcB = p.srcC = []; p.trans = False; p.states = 1
    p.dma = False; p.wide_store = []; p.ld_dst = []; p.cnt = None; p.dpp = False
    R = [regs_of(o) for o in opsx]
    base = name.replace("_e32", "").replace("_e64", "")
    if name == "s_nop":
        p.cls = 'nop'; p.states = int(opsx[0], 0) + 1
    elif name.startswith("v_mfma"):
        p.cls = 'mfma'; p.wr = R[0]; p.srcA = R[1]; p.srcB = R[2]; p.srcC = R[3]; p.rd = R[1] + R[2] + R[3]
    elif name.startswith("v_"):
        p.cls = 'valu'
        p.trans = base in TRANS
        p.dpp = ("quad_perm" in mods or "row_" in mods)
        if base.startswith("v_permlane") and "swap" in base:
            p.wr = R[0] + R[1]; p.rd = R[0] + R[1]
        elif base in ("v_add_co_u32", "v_sub_co_u32", "v_addc_co_u32", "v_mad_u64_u32"):
            p.wr = R[0] + R[1]; p.rd = sum(R[2:], [])
        elif base in ("v_fmac_f32", "v_pk_fmac_f16", "v_writelane_b32"):
            p.wr = R[0]; p.rd = sum(R, [])
        else:
            p.wr = R[0]; p.rd = sum(R[1:], [])
        if base.startswith("v_cmpx"):
            p.wr = p.wr + regs_of("exec")
    elif name.startswith("ds_"):
        p.cls = 'ds'; p.cnt = 'lg'
        if "read" in name or "permute" in name or "swizzle" in name:
            p.wr = R[0]; p.ld_dst = R[0]; p.rd = sum(R[1:], [])
        else:
            p.rd = sum(R, [])
    elif name.startswith("buffer_") or name.startswith("global_"):
        p.cls = 'vmem'; p.cnt = 'vm'
        mm = mods.split()
        if "load" in name:
            if "lds" in mm or "load_lds" in name:
                p.dma = True; p.rd = sum(R, []) + regs_of("m0")
            else:
                p.wr = R[0]; p.ld_dst = R[0]; p.rd = sum(R[1:], [])
        elif "store" in name:
            p.rd = sum(R, [])
            if "x4" in name or "x3" in name:
                p.wide_store = R[0] if name.startswith("buffer_") else R[1]
        elif "atomic" in name:
            p.rd = sum(R, [])
            if "sc0" in mm:
                p.wr = R[0]; p.ld_dst = R[0]
        else:
            p.rd = sum(R, [])
    elif name.startswith("s_"):
        p.cls = 'salu'
        if name.startswith("s_load") or name in ("s_memtime", "s_memrealtime"):
            p.cls = 'smem'; p.cnt = 'lg'; p.wr = R[0]; p.ld_dst = R[0]; p.rd = sum(R[1:], [])
        elif name.startswith("s_cmp") or name.startswith("s_bitcmp") or name.startswith("s_cbranch") or name in ("s_branch", "s_barrier", "s_endpgm", "s_waitcnt", "s_setprio", "s_sleep", "s_setpc_b64"):
            p.rd = sum(R, [])
        elif "saveexec" in name:
            p.wr = R[0] + regs_of("exec"); p.rd = sum(R[1:], []) + regs_of("exec")
        else:
            p.wr = R[0]; p.rd = sum(R[1:], [])
    else:
        raise ValueError("unknown instr " + text)
    return p

def need_states(P, C):
    n = 0
    Pw = set(P.wr); Cr = set(C.rd); Cw = set(C.wr)
    if P.cls == 'mfma':
        if C.cls == 'mfma':
            if Pw & set(C.srcA + C.srcB): n = max(n, 12)
            if Pw & set(C.srcC) and P.wr != C.srcC: n = max(n, 10)
            if Pw & Cw and P.wr != C.srcC: n = max(n, 10)
        elif C.cls == 'valu':
            if Pw & (Cr | Cw): n = max(n, 12)
            if set(P.srcC) & Cw: n = max(n, 7)
        elif C.cls in ('ds', 'vmem'):
            if Pw & (Cr | Cw): n = max(n, 12)
    if P.cls == 'valu':
        vw = {r for r in Pw if r[0] in 'va'}
        sw = {r for r in Pw if r[0] == 's'}
        if C.cls == 'mfma':
            if vw & Cr: n = max(n, 2)
            if set(regs_of("exec")) & sw: n = max(n, 4)
        if C.cls == 'valu':
            if P.trans and not C.trans and (vw & Cr): n = max(n, 1)
            if C.name.startswith("v_readfirstlane") or C.name.startswith("v_readlane"):
                if vw & Cr: n = max(n, 1)
                if sw & Cr: n = max(n, 4)
            if C.name.startswith("v_permlane") and (vw & Cr): n = max(n, 2)
            if C.dpp and (vw & Cr): n = max(n, 2)
            if sw & Cr: n = max(n, 2)
            if ("op_sel" in P.text or "sdwa" in P.text or "dst_sel" in P.text) and (vw & (Cr | Cw)): n = max(n, 1)
        if C.cls == 'vmem' and (sw & Cr): n = max(n, 5)
    if P.cls == 'salu' and ('s', 124) in Pw and C.dma: n = max(n, 1)
    if P.wide_store and set(P.wide_store) & Cw:
        n = max(n, 2 if C.cls in ('valu', 'mfma') else 1)
    return n

def hazard_pass(items, verbose=True):
    out = []
    hist = []
    vmq = []; lgq = []
    stack = []
    nins = 0
    for kind, text in items:
        if kind == 'fork':
            stack.append(([[p, s] for p, s in hist], list(vmq), list(lgq), None)); continue
        if kind == 'alt':
            h0, v0, l0, _ = stack[-1]
            stack[-1] = (h0, v0, l0, ([[p, s] for p, s in hist], list(vmq), list(lgq)))
            hist = [[p, s] for p, s in h0]; vmq = list(v0); lgq = list(l0); continue
        if kind == 'join':
            _, _, _, (h1, v1, l1) = stack.pop()
            hist = hist + h1
            def merge(a, b):
                n = max(len(a), len(b)); a = [set()] * (n - len(a)) + a; b = [set()] * (n - len(b)) + b
                return [x | y for x, y in zip(a, b)]
            vmq = merge(vmq, v1); lgq = merge(lgq, l1); continue
        if kind == 'assume':
            if 'v' in text: vmq = []
            if 'l' in text: lgq = []
            continue
        if kind == 'label':
            out.append(text + ":"); continue
        if kind == 'raw':
            out.append(text); continue
        c = parse(text)
        need = 0
        for p, s in hist:
            n = need_states(p, c) - s
            if n > need: need = n; why = p.text
        if need > 0:
            if verbose: print(f"  [nop {need}] before '{text}' after '{why}'")
            k = need
            while k > 0:
                m = min(k, 16); out.append(f"    s_nop {m-1}"); k -= m
            for h in hist: h[1] += need
            nins += 1
        if c.name == "s_waitcnt":
            m = re.search(r"vmcnt\((\d+)\)", text)
            if m:
                n = int(m.group(1)); vmq = vmq[len(vmq) - n:] if n < len(vmq) and n > 0 else ([] if n == 0 else vmq)
            m = re.search(r"lgkmcnt\((\d+)\)", text)
            if m:
                n = int(m.group(1)); lgq = lgq[len(lgq) - n:] if n < len(lgq) and n > 0 else ([] if n == 0 else lgq)
        else:
            touched = set(c.rd) | set(c.wr)
            for q, nm in ((vmq, 'vm'), (lgq, 'lg')):
                for d in q:
                    if d & touched:
                        raise AssertionError(f"pending {nm} load dest {sorted(d & touched)[:4]} touched by '{text}'")
            if c.cnt == 'vm': vmq.append(set(c.ld_dst))
            if c.cnt == 'lg': lgq.append(set(c.ld_dst))
        out.append("    " + text)
        for h in hist: h[1] += c.states
        hist.append([c, 0])
        hist = [h for h in hist if h[1] < 16]
    return out

def interleave(mains, fillers, budget=24):
    fillers = flat(fillers)
    total = sum(f.cost for f in fillers)
    out = []; k = 0; acc = 0
    n = len(mains)
    for i, m in enumerate(mains):
        out += flat(m)
        target = total * (i + 1) / n
        while k < len(fillers) and (acc + fillers[k].cost / 2 <= target or i == n - 1):
            out.append(fillers[k]); acc += fillers[k].cost; k += 1
    return out
```

```python
from asmlib import *
from gen import *
import gen as G

RING = 5
vRing = 64
vS = [48, 192]
vO = [144, 160, 208, 224]
vP = [240, 248]
aQf = 224
vVo = 5
vW2d = 6
vWf = 10
vRw = 12
vRr = 15
vMo = 16
SCR = 28672
QORD = [1, 2, 3, 0]
SPIN = 0x20000

def poll_loop(g, name, mask=None):
    e = g.e
    e(f"s_mov_b32 s{sSpin}, {SPIN:#x}", L(name))
    e(VM(f"buffer_load_dword v{vPd}, v{vPoll}, {srd(SWS)}, s{sT3} offen sc1"), DRAIN(lg=False))
    e(f"v_cmp_ne_u32 vcc, v{vPd}, v{vTag}")
    if mask is not None: e(f"s_and_b64 vcc, vcc, s[{mask}:{mask+1}]")
    else: e("s_cmp_lg_u64 vcc, 0")
    e(f"s_cbranch_scc0 {name}_ok",
      f"s_sub_u32 s{sSpin}, s{sSpin}, 1", f"s_cbranch_scc0 {name}", L(name + "_ok"))

def kv_load(u, what):
    sl = vRing + 16 * (u % RING)
    if what == 'k':
        return [VM(f"buffer_load_dwordx4 {v(sl+4*i,4)}, v{vL16}, {srd(SWS)}, s{sKo} offen offset:{1024*i} sc1") for i in range(2)] + \
               [I(f"s_add_u32 s{sKo}, s{sKo}, 28672")]
    return [VM(f"buffer_load_dwordx4 {v(sl+8+4*i,4)}, v{vVo}, {srd(SWS)}, s{sVo} offen offset:{1024*i} sc1") for i in range(2)] + \
           [I(f"s_add_u32 s{sVo}, s{sVo}, 2048")]

def w_group(slot, n, srdn, so, step):
    o = [I(f"s_add_u32 m0, s{sLf}, {slot*2048}")]
    toks = [VM(f"buffer_load_dwordx4 v{vW2d+i}, {srd(srdn)}, s{so} offen offset:{1024*i} lds") for i in range(n)]
    return o, toks, [I(f"s_add_u32 s{so}, s{so}, {step}")]

def attn_setup(g):
    e = g.e
    t = vT
    e(f"s_mul_i32 s52, s{sJ}, 28", f"s_lshl_b32 s53, s{sOdd}, 2", "s_sub_u32 s53, s52, s53",
      f"s_lshl_b32 s{sKo}, s53, 6", f"s_mul_i32 s54, s{sW}, {16*28672}", f"s_add_u32 s{sKo}, s{sKo}, s54", f"s_add_u32 s{sKo}, s{sKo}, {WS_K:#x}",
      f"s_lshl_b32 s{sVo}, s{sJ}, 17", f"s_lshl_b32 s54, s{sW}, 15", f"s_add_u32 s{sVo}, s{sVo}, s54", f"s_add_u32 s{sVo}, s{sVo}, {WS_V:#x}")
    e(f"s_lshr_b32 s54, s53, 6", f"s_lshl_b32 s{sMask}, 1, s54",
      "s_add_u32 s54, s53, 31", "s_lshr_b32 s54, s54, 6", "s_lshl_b32 s54, 1, s54", f"s_or_b32 s{sMask}, s{sMask}, s54",
      "s_lshr_b32 s54, s52, 6", "s_lshl_b32 s54, 0x100, s54", f"s_or_b32 s{sMask}, s{sMask}, s54",
      "s_add_u32 s54, s52, 27", "s_lshr_b32 s54, s54, 6", "s_lshl_b32 s54, 0x100, s54", f"s_or_b32 s{sMask}, s{sMask}, s54",
      f"s_lshl_b32 s54, 1, s{sJ}", f"s_or_b32 s{sMask}, s{sMask}, s54",
      f"s_mul_i32 s{sMask}, s{sMask}, 0x10001", f"s_mov_b32 s{sMask+1}, s{sMask}")
    e(f"v_lshrrev_b32 v{t}, 4, v{vLane}", f"v_and_b32 v{t+1}, 15, v{vLane}", f"v_lshlrev_b32 v{t+1}, 2, v{t+1}",
      f"v_lshl_add_u32 v{vPoll}, v{t}, 7, v{t+1}",
      f"s_lshl_b32 s{sT3}, s{sW}, 9", f"s_add_u32 s{sT3}, s{sT3}, {WS_FLAG:#x}",
      f"v_and_b32 v{t}, 31, v{vLane}", f"v_mov_b32 v{t+2}, {OOB:#x}", f"v_cmp_gt_u32 vcc, 29, v{t}",
      f"s_mul_i32 s{sLf}, s{sW}, 40960",
      f"s_and_b32 s52, s{sJ}, 7", "s_min_u32 s52, s52, 6", "s_lshl_b32 s52, s52, 7",
      f"v_cndmask_b32 v{vVo}, v{t+2}, v{vL16}, vcc",
      f"s_mul_i32 s{sW2o}, s{sW}, {448*896}", f"s_add_u32 s{sW2o}, s{sW2o}, s52",
      f"s_mul_i32 s{sWoo}, s{sW}, {112*896}", f"s_add_u32 s{sWoo}, s{sWoo}, s52")
    e(f"v_lshrrev_b32 v{t}, 3, v{vLane}", f"v_mul_u32_u24 v{vW2d}, 896, v{t}",
      f"v_and_b32 v{t}, 7, v{vLane}", f"v_bfe_u32 v{t+2}, v{vLane}, 4, 1", f"v_lshlrev_b32 v{t+2}, 2, v{t+2}",
      f"v_xor_b32 v{t}, v{t}, v{t+2}", f"v_lshl_add_u32 v{vW2d}, v{t}, 4, v{vW2d}")
    for i in range(1, 4): e(f"v_add_u32 v{vW2d+i}, {6144*i}, v{vW2d}")
    e(f"s_sub_u32 s52, s{sLf}, 0x10000", f"v_add_u32 v{vWf}, s52, v{vWr}", f"v_xor_b32 v{vWf+1}, 64, v{vWf}")
    for i in range(1, 4):
        e(f"s_add_u32 s52, s{sW}, {i}", "s_and_b32 s52, s52, 3", "s_mul_i32 s52, s52, 40960", f"s_add_u32 s52, s52, {SCR+(i-1)*4096}",
          f"v_add_u32 v{vRw+i-1}, s52, v{vL16}")
    e(f"s_add_u32 s52, s{sLf}, {SCR}", f"v_add_u32 v{vRr}, s52, v{vL16}",
      f"v_lshrrev_b32 v{t}, 5, v{vLane}", f"v_add_u32 v{vMo}, -1, v{t}")
    e(f"s_lshl_b32 s52, s{sRB}, 2", f"s_lshr_b32 s53, s{sJ}, 3", "s_lshl_b32 s53, s53, 1", "s_add_u32 s52, s52, s53",
      f"s_lshr_b32 s53, s{sW}, 1", "s_add_u32 s52, s52, s53",
      f"s_mul_i32 s54, s{sW}, {28*1024}", f"s_add_u32 s54, s54, {WS_H:#x}",
      f"s_mul_i32 s{sHo}, s52, 114688", f"s_add_u32 s{sHo}, s{sHo}, s54",
      "s_xor_b32 s53, s52, 1",
      f"s_mul_i32 s{sHo2}, s53, 114688", f"s_add_u32 s{sHo2}, s{sHo2}, s54",
      f"s_lshl_b32 s{sOo}, s52, 15", f"s_lshl_b32 s54, s{sW}, 13", f"s_add_u32 s{sOo}, s{sOo}, s54", f"s_add_u32 s{sOo}, s{sOo}, {WS_O:#x}",
      f"s_mov_b32 s{sCnt}, s52")

def h_loads():
    o = []
    for t in range(28):
        for b in range(2):
            so = sHo if b == 0 else sHo2
            o.append([VM(f"buffer_load_dwordx4 {a(8*t+4*b,4)}, v{vL16}, {srd(SWS)}, s{so} offen offset:{1024*(t%4)} sc1")])
            if t % 4 == 3: o[-1].append(I(f"s_add_u32 s{so}, s{so}, 4096"))
    return o

def attention(g):
    e = g.e
    attn_setup(g)
    poll_loop(g, "L_pkv", mask=sMask)
    e(g.stamp())
    ktok = {}; vtok = {}
    def ld(u, what):
        ops = kv_load(u, what)
        (ktok if what == 'k' else vtok)[u] = [x for x in ops if x.kind == 'vm']
        return ops
    for u in range(RING - 1):
        e(ld(u, 'k'), ld(u, 'v'))
    e(f"v_and_b32 v{vPoll}, 60, v{vPoll}", f"s_lshl_b32 s{sT3}, s{sRB}, 7", f"s_add_u32 s{sT3}, s{sT3}, {WS_FLAG+4096:#x}")
    hl = h_loads()
    g.h_tok = [x for grp in hl for x in grp if x.kind == 'vm']
    w2 = []
    g.w2_tok = {}
    for grp in range(7):
        pre, toks, post = w_group(2 * grp, 4, SW2, sW2o, 32 * 896)
        g.w2_tok[2 * grp] = toks[:2]; g.w2_tok[2 * grp + 1] = toks
        w2 += [[pre[0], I("s_nop 0"), toks[0]], [toks[1]], [toks[2]], [toks[3]] + post]

    def qk(t, sidx):
        u, qi = divmod(t, 4); q = QORD[qi]
        sl = vRing + 16 * (u % RING); S = vS[t % 2]
        cc = "0" if sidx == 0 else v(S, 16)
        pre = [W(vm=ktok[u])] if (qi == 0 and sidx == 0) else []
        return pre + [I(f"{MF} {v(S,16)}, {v(sl+4*sidx,4)}, {a(aQf+8*q+4*sidx,4)}, {cc}")]
    def pv(t, sidx):
        u, qi = divmod(t, 4); q = QORD[qi]
        sl = vRing + 16 * (u % RING); P = vP[t % 2]
        cc = "0" if (u == 0 and sidx == 0) else v(vO[q], 16)
        pre = [W(vm=vtok[u])] if (qi == 0 and sidx == 0) else []
        return pre + [I(f"{MF} {v(vO[q],16)}, {v(sl+8+4*sidx,4)}, {v(P+4*sidx,4)}, {cc}")]
    def sm(t, k):
        S = vS[t % 2]; P = vP[t % 2]
        return [I(f"v_exp_f32 v{S+4*k+i}, v{S+4*k+i}") for i in range(4)] + \
               [I(f"v_cvt_pk_bf16_f32 v{P+2*k+i}, v{S+4*k+2*i}, v{S+4*k+2*i+1}") for i in range(2)]

    e(W(lg=g.q_tok))
    e(qk(0, 0), qk(0, 1))
    red_w = []
    hpoll = None
    for t in range(64):
        u, qi = divmod(t, 4)
        ex = [[], [], [], []]
        nu = u + RING - 1
        if nu < 16:
            if qi == 0:
                k = ld(nu, 'k'); ex[0] += k[:1]; ex[2] += k[1:]
            if qi == 1:
                k = ld(nu, 'v'); ex[0] += k[:1]; ex[2] += k[1:]
        pre = []
        if t == 4:
            pre = [DRAIN(lg=False), I("s_barrier"), I(f"s_mov_b32 s52, {WS_FLAG+4096:#x}"),
                   VM(f"buffer_store_dword v{vTag}, v{vFlag}, {srd(SWS)}, s52 offen sc1")]
        if 1 <= u <= 4:
            slots = [1, 3] if qi < 2 else [0, 2]
            if qi == 3: slots = [0]
            for sl_ in slots:
                if w2: ex[sl_] += w2.pop(0)
        if t == 14:
            hpoll = VM(f"buffer_load_dword v{vPd}, v{vPoll}, {srd(SWS)}, s{sT3} offen sc1"); ex[1].append(hpoll)
        if t == 20:
            pre = [W(vm=hpoll), I(f"v_cmp_ne_u32 vcc, v{vPd}, v{vTag}"), I("s_cmp_lg_u64 vcc, 0"), I("s_cbranch_scc1 L_hslow"), L("L_hback")]
        if u >= 5:
            slots = [1] if (qi < 2 and nu < 16) else [1, 3]
            if qi == 3 and nu < 16: slots = [1]
            for sl_ in slots:
                if hl: ex[sl_] += hl.pop(0)
        if t >= 62:
            q = QORD[t - 62]
            ws_ = [LG(f"ds_write_b128 v{vRw+q-1}, {v(vO[q]+4*i,4)} offset:{1024*i}") for i in range(4)]
            red_w += ws_
            ex[1] += ws_[:1]; ex[2] += ws_[1:2]; ex[3] += ws_[2:]
        m = [qk(t + 1, 0) if t < 63 else [], pv(t - 1, 0) if t > 0 else [],
             qk(t + 1, 1) if t < 63 else [], pv(t - 1, 1) if t > 0 else []]
        e(pre)
        for k in range(4):
            e(m[k], ex[k], sm(t, k))
    assert not w2 and not hl, (len(w2), len(hl))
    e(pv(63, 0), pv(63, 1))
    q = QORD[2]
    ws_ = [LG(f"ds_write_b128 v{vRw+q-1}, {v(vO[q]+4*i,4)} offset:{1024*i}") for i in range(4)]
    e(ws_, W(lg=ws_), "s_barrier")
    e(g.stamp())
    O = vO[0]; R = vRing
    rr = [LG(f"ds_read_b128 {v(R+4*i,4)}, v{vRr} offset:{1024*i}") for i in range(12)]
    e(rr)
    for i in range(4):
        e(W(lg=rr[4 + i]))
        for k in range(4): e(f"v_add_f32 v{O+4*i+k}, v{O+4*i+k}, v{R+4*i+k}")
        for k in range(4): e(f"v_add_f32 v{O+4*i+k}, v{O+4*i+k}, v{R+16+4*i+k}")
    for i in (3, 0, 1, 2):
        e(W(lg=rr[8 + i]))
        for k in range(4): e(f"v_add_f32 v{O+4*i+k}, v{O+4*i+k}, v{R+32+4*i+k}")
    t = vT
    e(f"v_mov_b32 v{t}, v{O+12}", f"v_mov_b32 v{t+1}, v{O+12}",
      f"v_max3_f32 v{t+2}, abs(v{O}), abs(v{O+1}), abs(v{O+2})",
      f"v_max3_f32 v{t+3}, abs(v{O+3}), abs(v{O+4}), abs(v{O+5})",
      f"v_permlane32_swap_b32 v{t}, v{t+1}")
    for i in range(5):
        e(f"v_max3_f32 v{t+2+i%2}, abs(v{O+6+2*i}), abs(v{O+7+2*i}), v{t+2+i%2}")
    e(f"v_cmp_nle_f32 vcc, {f2u(2.0**-60):#x}, v{t+1}", f"s_mov_b64 s[52:53], vcc",
      f"v_cmp_nge_f32 vcc, {f2u(2.0**60):#x}, v{t+1}", f"s_or_b64 s[52:53], s[52:53], vcc",
      f"v_cmp_nge_f32 vcc, {f2u(2.0**100):#x}, v{t+2}", f"s_or_b64 s[52:53], s[52:53], vcc",
      f"v_cmp_nge_f32 vcc, {f2u(2.0**100):#x}, v{t+3}", f"s_or_b64 s[52:53], s[52:53], vcc",
      "s_cbranch_scc1 L_fallback", L("L_norm"))
    e(f"v_rcp_f32 v{t+1}, v{t+1}",
      f"s_lshl_b32 s52, s{sRB}, 2", f"s_add_u32 s52, s52, s{sW}", "s_lshl_b32 s52, s52, 15",
      f"v_mul_f32 v{t+1}, v{vG}, v{t+1}",
      f"s_lshl_b32 s53, s{sJ}, 11", "s_add_u32 s52, s52, s53", f"s_add_u32 s52, s52, {WS_O:#x}")
    for i in range(16): e(f"v_mul_f32 v{O+i}, v{t+1}, v{O+i}")
    for i in range(8): e(f"v_cvt_pk_bf16_f32 v{O+i}, v{O+2*i}, v{O+2*i+1}")
    e(f"v_and_b32 v{O+6}, v{vMo}, v{O+6}", f"v_and_b32 v{O+7}, v{vMo}, v{O+7}")
    g.o_st = [VM(f"buffer_store_dwordx4 {v(O+4*i,4)}, v{vL16}, {srd(SWS)}, s52 offen offset:{1024*i} sc1") for i in range(2)]
    e(g.o_st)
    g.tail = out_of_line

def out_of_line(g):
    e = g.e
    e(L("L_hslow"))
    poll_loop(g, "L_ph")
    e("s_branch L_hback")
    S = vS[0]; C = vS[1]; P = vP[0]; O = vO[0]; R = vRing; t = vT
    e(L("L_fallback"), DRAIN())
    base = [f"s_mul_i32 s52, s{sJ}, 28", f"s_lshl_b32 s53, s{sOdd}, 2", "s_sub_u32 s53, s52, s53",
            f"s_lshl_b32 s{sKo}, s53, 6", f"s_add_u32 s{sKo}, s{sKo}, {WS_K:#x}",
            f"s_lshl_b32 s{sVo}, s{sJ}, 17", f"s_add_u32 s{sVo}, s{sVo}, {WS_V:#x}", "s_mov_b32 s54, 64"]
    e(base, f"v_mov_b32 v{t}, 0xff800000", L("L_fb1"))
    e(kv_load(0, 'k'), DRAIN())
    e(f"{MF} {v(S,16)}, {v(R,4)}, {a(aQf,4)}, 0", f"{MF} {v(S,16)}, {v(R+4,4)}, {a(aQf+4,4)}, {v(S,16)}", "s_nop 15")
    for i in range(8): e(f"v_max3_f32 v{t}, v{S+2*i}, v{S+2*i+1}, v{t}")
    e("s_sub_u32 s54, s54, 1", "s_cmp_lg_u32 s54, 0", "s_cbranch_scc1 L_fb1")
    e(f"v_mov_b32 v{t+1}, v{t}", "s_nop 1", f"v_permlane32_swap_b32 v{t}, v{t+1}", "s_nop 1", f"v_max_f32 v{t}, v{t}, v{t+1}")
    for i in range(16): e(f"v_sub_f32 v{C+i}, 0, v{t}", f"v_mov_b32 v{O+i}, 0")
    e(base, L("L_fb2"))
    e(kv_load(0, 'k'), kv_load(0, 'v'), DRAIN())
    e(f"{MF} {v(S,16)}, {v(R,4)}, {a(aQf,4)}, {v(C,16)}", f"{MF} {v(S,16)}, {v(R+4,4)}, {a(aQf+4,4)}, {v(S,16)}", "s_nop 15")
    for i in range(16): e(f"v_exp_f32 v{S+i}, v{S+i}")
    for i in range(8): e(f"v_cvt_pk_bf16_f32 v{P+i}, v{S+2*i}, v{S+2*i+1}")
    e("s_nop 1", f"{MF} {v(O,16)}, {v(R+8,4)}, {v(P,4)}, {v(O,16)}", f"{MF} {v(O,16)}, {v(R+12,4)}, {v(P+4,4)}, {v(O,16)}", "s_nop 15")
    e("s_sub_u32 s54, s54, 1", "s_cmp_lg_u32 s54, 0", "s_cbranch_scc1 L_fb2")
    e(f"v_mov_b32 v{t}, v{O+12}", f"v_mov_b32 v{t+1}, v{O+12}", "s_nop 1", f"v_permlane32_swap_b32 v{t}, v{t+1}", "s_nop 1",
      "s_branch L_norm")

vF = 64
vFW = 176
vOF = [128, 208]
def ofr(k, b): return (128 + 8 * k + 4 * b) if k < 6 else (208 + 8 * (k - 6) + 4 * b)

def fin(g):
    e = g.e
    for grp in range(7, 10):
        pre, toks, post = w_group(2 * grp, 4, SW2, sW2o, 32 * 896)
        g.w2_tok[2 * grp] = toks[:2]; g.w2_tok[2 * grp + 1] = toks
        e(pre, "s_nop 0", toks, post)
    e(DRAIN(lg=False), "s_barrier", f"s_mov_b32 s52, {WS_FLAG+8192:#x}")
    e(VM(f"buffer_store_dword v{vTag}, v{vFlag}, {srd(SWS)}, s52 offen sc1"))
    e(g.stamp())
    e(f"s_cmp_lg_u32 s{sKILL}, 0", "s_cbranch_scc1 L_fin")
    def slot(t): return t if t < 20 else t - 12
    def reads(off, buf):
        wf = vFW + 8 * buf
        return [LG(f"ds_read_b64_tr_b16 {v(wf+4*c+2*h,2)}, v{vWf+c} offset:{off+512*h}") for c in range(2) for h in range(2)]
    NT = 36
    wo_tok = []
    def src(t):
        if t < 28: return slot(t) * 2048, g.w2_tok[t]
        i, sidx = divmod(t - 28, 2)
        return (28 * i + 16 * sidx) * 128, wo_tok
    rds = {}
    def issue_reads(t):
        off, toks = src(t)
        rds[t] = reads(off, t % 4)
        return [W(vm=toks)] + rds[t]
    e(issue_reads(0), issue_reads(1))
    e(f"v_and_b32 v{vPoll}, 12, v{vPoll}", f"s_lshl_b32 s{sT3}, s{sRB}, 7", f"s_lshl_b32 s52, s{sW}, 4", f"s_add_u32 s{sT3}, s{sT3}, s52",
      f"s_add_u32 s{sT3}, s{sT3}, {WS_FLAG+8192:#x}")
    pend = []
    for t in range(NT):
        wf = vFW + 8 * (t % 4)
        if t == 28:
            e(g.stamp())
            poll_loop(g, "L_po")
            e(g.stamp())
            g.of_tok = {}
            e(f"s_xor_b32 s52, s{sOo}, 0x8000", f"s_add_u32 s53, s{sOo}, 4096", "s_add_u32 s54, s52, 4096")
            for k in range(8):
                g.of_tok[k] = []
                for b in range(2):
                    so = [[sOo, 53], [52, 54]][b][k // 4]
                    x = VM(f"buffer_load_dwordx4 {v(ofr(k,b),4)}, v{vL16}, {srd(SWS)}, s{so} offen offset:{1024*(k%4)} sc1")
                    g.of_tok[k].append(x); e(x)
            for i in range(4):
                for r in range(16): e(f"v_mul_f32 v{vF+16*i+r}, v{vG1+(i>>1)}, v{vF+16*i+r}")
        B = [a(8 * t, 4), a(8 * t + 4, 4)] if t < 28 else [v(ofr(t - 28, 0), 4), v(ofr(t - 28, 1), 4)]
        def mm(i):
            cc = "0" if t == 0 else v(vF + 16 * i, 16)
            return I(f"{MF} {v(vF+16*i,16)}, {v(wf+4*(i&1),4)}, {B[i>>1]}, {cc}")
        w0 = W(lg=rds[t], vm=(g.h_tok[2 * t + 1] if t < 28 else g.of_tok[t - 28]))
        if t % 2 == 1 and t < 16:
            if t < 8:
                n = 4 if t < 7 else 3
                pre, toks, post = w_group(t - 1, n, SWO, sWoo, 32 * 896); wo_tok += toks
            else:
                pre, toks, post = w_group(t - 1, 4, SW2, sW2o, 32 * 896)
                g.w2_tok[t + 11] = toks[:2]; g.w2_tok[t + 12] = toks
            pend += [pre + [I("s_nop 0"), toks[0]]] + [[x] for x in toks[1:-1]] + [[toks[-1]] + post]
        nx = issue_reads(t + 2) if t + 2 < NT else []
        p0 = pend.pop(0) if pend else []
        p1 = pend.pop(0) if pend else []
        e(w0, mm(0), nx[:3], mm(1), nx[3:], mm(2), p0, mm(3), p1)
    e(g.stamp())
    t = vT
    e(f"v_add_u32 v{t}, s{sLf}, v{vL16}")
    for i in range(1, 4):
        e(f"s_xor_b32 s52, s{sW}, {i}", "s_mul_i32 s52, s52, 40960", f"s_add_u32 s52, s52, {(i-1)*4096}", f"v_add_u32 v{t+i}, s52, v{vL16}")
    ws_ = []
    for i in range(1, 4):
        ws_ += [LG(f"ds_write_b128 v{t}, {v(vF+16*i+4*k,4)} offset:{(i-1)*4096+1024*k}") for k in range(4)]
    e(ws_)
    e(f"v_and_b32 v{t+4}, 31, v{vLane}", f"v_mul_u32_u24 v{t+4}, 896, v{t+4}", f"v_lshrrev_b32 v{t+5}, 5, v{vLane}",
      f"v_lshl_add_u32 v{t+4}, v{t+5}, 4, v{t+4}",
      f"s_mul_i32 s52, s{sCnt}, {32*896}", f"s_and_b32 s53, s{sJ}, 7", "s_lshl_b32 s53, s53, 7", "s_add_u32 s52, s52, s53",
      f"s_lshl_b32 s53, s{sCH}, 6", "s_add_u32 s52, s52, s53")
    e(W(lg=ws_), "s_barrier")
    R = 128
    rr = [LG(f"ds_read_b128 {v(R+16*(i-1)+4*k,4)}, v{t+i} offset:{1024*k}") for k in range(4) for i in range(1, 4)]
    e(rr)
    for k in range(4):
        e(W(lg=rr[3 * k + 2]))
        for i in range(3):
            for r in range(4): e(f"v_add_f32 v{vF+4*k+r}, v{vF+4*k+r}, v{R+16*i+4*k+r}")
        e(f"v_cvt_pk_bf16_f32 v{vF+16+2*k}, v{vF+4*k}, v{vF+4*k+1}", f"v_cvt_pk_bf16_f32 v{vF+16+2*k+1}, v{vF+4*k+2}, v{vF+4*k+3}")
        if k % 2 == 1:
            e(VM(f"buffer_store_dwordx4 {v(vF+16+4*(k//2),4)}, v{t+4}, {srd(SOUT)}, s52 offen offset:{32*(k//2)}"))
    e(L("L_fin"))
```

```python
import sys, os, argparse
sys.path.insert(0, os.path.dirname(os.path.abspath(__file__)))
from asmlib import *

NAME = "gated_mix__softmax_full_mha__dense_activation_mish__prompt"
MF = "v_mfma_f32_32x32x16_bf16"

WS_EPOCH = 0
WS_FLAG = 4096
WS_K = 0x10000
WS_V = 0x200000
WS_H = 0x400000
WS_O = 0xB00000
WS_DIAG = 0xD00000
WS_SIZE = 0x2000000
OOB = 0x40000000

sRB, sJ, sW, sBLK, sKILL = 3, 4, 5, 6, 7
SX, SWQ, SW1, SWS, SB1, SW2, SWO, SG, SOUT, SDBG = 8, 12, 16, 20, 24, 28, 32, 36, 40, 44
def srd(n): return f"s[{n}:{n+3}]"
sXo, sWao, sWbo = 48, 49, 50
sLw = 51
sT0, sT1, sT2, sT3 = 52, 53, 54, 55
sKVa, sKVb = 56, 57
sHa, sHb = 58, 59
sHa2, sHb2 = 60, 61
sOdd = 62
sCH = 63
sMask = 64
sKo, sVo = 66, 67
sHo = 68
sHo2 = 69
sW2o = 70
sLf = 71
sSpin = 72
sOo = 73
sWoo = 74
sCnt = 75
sST = 78

def v(a, n=1): return f"v{a}" if n == 1 else f"v[{a}:{a+n-1}]"
def a(x, n=1): return f"a{x}" if n == 1 else f"a[{x}:{x+n-1}]"
def s(x): return f"s{x}"

vLane = 1
vL16 = 2
vTag = 3
vFlag = 4
vXd = 5
vWa = 9
vWb = 11
vWq = 15
vXr = 19
vWr = 27
vQr = 28
vKVst = 29
vGa = 30
vGd = 32
vMa, vMb = 34, 35
vG = 36
vG1 = 37
vPoll = 39
vPd = 40
vT = 41
vWF = 48
aKV = 80
aH = 112
vBias = 176
aQ = 208
vPk = 224
vM = 240

LOG2E = 0x3fb8aa3b
QSCALE = 0x3e8b9783

import struct, math
def f2u(x): return struct.unpack("<I", struct.pack("<f", x))[0]
QSCALE = f2u(28 ** -0.5 * math.log2(math.e))

class Gen:
    def __init__(self, diag=False, stop=None):
        self.diag = diag; self.stop = stop
        self.ops = []
        self.nst = 0
        self.tail = None
    def e(self, *x): self.ops += flat(x)
    def stamp(self):
        if not self.diag: return []
        r = sST + 2 * self.nst; self.nst += 1
        assert r + 1 <= 101
        return [I(f"s_memtime s[{r}:{r+1}]")]

    def stamp2(self):
        return self.stamp() if self.diag == 2 else []

    def prologue(self):
        e = self.e
        e("s_cmp_ge_u32 s2, 0x100", "s_cbranch_scc1 L_end")
        e(f"s_load_dwordx2 s[{SX}:{SX+1}], s[0:1], 0",
          f"s_load_dwordx2 s[{SWQ}:{SWQ+1}], s[0:1], 8",
          f"s_load_dwordx2 s[{SW1}:{SW1+1}], s[0:1], 32",
          f"s_load_dwordx2 s[{SWS}:{SWS+1}], s[0:1], 80",
          f"s_load_dwordx2 s[{SB1}:{SB1+1}], s[0:1], 40")
        if self.diag:
            e("s_memrealtime s[76:77]")
        e(self.stamp())
        e("v_lshrrev_b32 v2, 6, v0", f"v_and_b32 v{vLane}, 63, v0",
          "s_and_b32 s52, s2, 1", "s_lshl_b32 s52, s52, 3",
          f"v_readfirstlane_b32 s{sW}, v2",
          "s_bfe_u32 s53, s2, 0x30003",
          f"s_add_u32 s{sRB}, s52, s53",
          "s_bfe_u32 s52, s2, 0x20001",
          "s_lshl_b32 s52, s52, 2",
          "s_lshr_b32 s53, s2, 6",
          f"s_add_u32 s{sJ}, s52, s53",
          f"s_lshr_b32 s52, s{sJ}, 3",
          f"s_sub_u32 s{sBLK}, s{sJ}, s52",
          f"s_min_u32 s{sBLK}, s{sBLK}, 13",
          f"s_and_b32 s52, s{sJ}, 7",
          "s_cmp_eq_u32 s52, 7",
          f"s_cselect_b32 s{sKILL}, {OOB:#x}, 0")
        for r, n in ((SX, 1835008), (SWQ, 1204224), (SW1, 1605632), (SWS, WS_SIZE), (SB1, 3584)):
            e(f"s_mov_b32 s{r+2}, {n:#x}", f"s_mov_b32 s{r+3}, 0x20000")
        t0, t1, t2, t3 = vT, vT + 1, vT + 2, vT + 3
        e(f"v_lshrrev_b32 v{t0}, 3, v{vLane}",
          f"v_and_b32 v{t1}, 7, v{vLane}",
          f"v_lshrrev_b32 v{t2}, 4, v{vLane}",
          f"v_xor_b32 v{t3}, v{t1}, v{t2}",
          f"v_lshlrev_b32 v{t3}, 4, v{t3}",
          f"v_mul_u32_u24 v{vXd}, 896, v{t0}",
          f"v_add_u32 v{vXd}, v{vXd}, v{t3}",
          f"v_xor_b32 v{vXd+1}, 64, v{vXd}",
          f"v_add_u32 v{vXd+1}, 6144, v{vXd+1}",
          f"v_add_u32 v{vXd+2}, 12288, v{vXd}",
          f"v_add_u32 v{vXd+3}, 12288, v{vXd+1}",
          f"v_and_b32 v{t2}, 1, v{t2}",
          f"v_lshlrev_b32 v{t2}, 2, v{t2}",
          f"v_xor_b32 v{t3}, v{t1}, v{t2}",
          f"v_lshlrev_b32 v{t3}, 4, v{t3}",
          f"v_mul_u32_u24 v{vWa}, 2688, v{t0}",
          f"v_add_u32 v{vWa}, v{vWa}, v{t3}",
          f"v_add_u32 v{vWa+1}, {8*2688-1024}, v{vWa}",
          f"v_mul_u32_u24 v{vWb}, 3584, v{t0}",
          f"v_add_u32 v{vWb}, v{vWb}, v{t3}",
          f"v_add_u32 v{vWb+1}, {8*3584-1024}, v{vWb}")
        e(f"s_lshl_b32 s{sLw}, s{sW}, 12",
          f"s_lshl_b32 s52, s{sRB}, 2", f"s_add_u32 s52, s52, s{sW}",
          f"s_mul_i32 s{sXo}, s52, {32*896}",
          f"s_mul_i32 s{sWao}, s{sW}, {16*2688}",
          f"s_lshl_b32 s53, s{sBLK}, 7", f"s_add_u32 s53, s53, 896",
          f"s_add_u32 s{sWao}, s{sWao}, s53",
          f"s_mul_i32 s{sWbo}, s{sW}, {16*3584}",
          f"s_lshl_b32 s53, s{sBLK}, 8",
          f"s_add_u32 s{sWbo}, s{sWbo}, s53",
          f"s_and_b32 s{sCH}, s{sW}, 1",
          f"s_and_b32 s{sOdd}, s{sJ}, 1")
        e(DRAIN(vm=False))
        e(self.stamp2())
        self.ch_tok = {}
        e(self.chunk_dma(0))
        hh16 = vT + 4
        e(f"v_lshrrev_b32 v{hh16}, 5, v{vLane}", f"v_lshlrev_b32 v{hh16}, 4, v{hh16}",
          f"s_lshl_b32 s52, s{sBLK}, 8", f"s_lshl_b32 s53, s{sCH}, 6", "s_add_u32 s52, s52, s53")
        self.bias_tok = []
        for i, off in enumerate((0, 32, 128, 160)):
            o = VM(f"buffer_load_dwordx4 {v(vPk+4*i,4)}, v{hh16}, {srd(SB1)}, s52 offen offset:{off}")
            self.bias_tok.append(o); e(o)
        self.ep_tok = VM(f"buffer_load_dword v{vTag}, off, {srd(SWS)}, 0 sc1"); e(self.ep_tok)
        for c in range(1, 5):
            e(self.chunk_dma(c))
        e(self.stamp2())
        e(f"s_load_dwordx2 s[{SW2}:{SW2+1}], s[0:1], 48",
          f"s_load_dwordx2 s[{SWO}:{SWO+1}], s[0:1], 16",
          f"s_load_dwordx2 s[{SG}:{SG+1}], s[0:1], 56",
          f"s_load_dwordx2 s[{SOUT}:{SOUT+1}], s[0:1], 64",
          f"s_load_dwordx2 s[{SDBG}:{SDBG+1}], s[0:1], 72")
        for r, n in ((SW2, 1605632), (SWO, 401408), (SG, 896), (SOUT, 1835008), (SDBG, 256)):
            e(f"s_mov_b32 s{r+2}, {n:#x}", f"s_mov_b32 s{r+3}, 0x20000")
        e("s_getpc_b64 s[54:55]", L("L_pc"),
          f"s_add_u32 s54, s54, {NAME}_kernel-L_pc", "s_addc_u32 s55, s55, -1",
          "s_lshr_b32 s52, s2, 3", "s_mul_i32 s52, s52, CODE_LINES_PER_WG",
          f"v_add_u32 v{t0}, s52, v0", f"v_min_u32 v{t0}, CODE_LINES-1, v{t0}", f"v_lshlrev_b32 v{t0}, 7, v{t0}",
          "v_cmp_gt_u32 vcc, CODE_LINES_PER_WG, v0",
          f"s_and_saveexec_b64 s[{sMask}:{sMask+1}], vcc", "s_cbranch_execz L_nopf")
        e(f"global_load_dword v{vPd}, v{t0}, s[54:55]")
        e(L("L_nopf"), "s_mov_b64 exec, -1")
        m, hh, x = vT, vT + 1, vT + 2
        e(f"v_lshlrev_b32 v{vL16}, 4, v{vLane}",
          f"v_add_u32 v{vWb+2}, {2*(8*3584-1024)}, v{vWb}",
          f"v_add_u32 v{vWb+3}, {3*(8*3584-1024)}, v{vWb}",
          f"v_lshrrev_b32 v{x}, 2, v{vLane}", f"v_mul_u32_u24 v{vWq}, 2688, v{x}",
          f"v_and_b32 v{x}, 3, v{vLane}", f"v_lshl_add_u32 v{vWq}, v{x}, 4, v{vWq}")
        for i in range(1, 4):
            e(f"v_add_u32 v{vWq+i}, {i*(16*2688-1024)}, v{vWq}")
        e(f"v_and_b32 v{m}, 31, v{vLane}", f"v_lshrrev_b32 v{hh}, 5, v{vLane}",
          f"v_bfe_u32 v{x}, v{vLane}, 1, 3", f"v_xor_b32 v{x}, v{x}, v{hh}", f"v_lshlrev_b32 v{x}, 4, v{x}",
          f"v_lshl_add_u32 v{x}, v{m}, 7, v{x}",
          f"v_add_u32 v{vXr}, s{sLw}, v{x}")
        for ks in range(1, 4):
            e(f"v_xor_b32 v{vXr+ks}, {32*ks}, v{vXr}")
        for ks in range(4):
            e(f"v_xor_b32 v{vXr+4+ks}, 0x1000, v{vXr+ks}")
        r_, c_, b_ = vT + 3, vT + 4, vT + 5
        e(f"v_bfe_u32 v{r_}, v{vLane}, 2, 2",
          f"v_and_b32 v{c_}, 1, v{vLane}", f"v_lshlrev_b32 v{c_}, 4, v{c_}",
          f"v_and_b32 v{b_}, 2, v{vLane}", f"v_lshl_add_u32 v{c_}, v{b_}, 2, v{c_}",
          f"v_and_b32 v{b_}, 16, v{vLane}", f"v_lshl_add_u32 v{c_}, v{b_}, 1, v{c_}",
          f"v_lshl_add_u32 v{b_}, v{hh}, 3, v{r_}",
          f"v_lshl_add_u32 v{vQr}, v{b_}, 6, v{c_}",
          f"v_add_u32 v{vQr}, 0x20000, v{vQr}",
          f"v_lshl_add_u32 v{vWr}, v{b_}, 7, v{c_}",
          f"v_lshrrev_b32 v{r_}, 1, v{r_}", f"v_xor_b32 v{r_}, s{sCH}, v{r_}",
          f"v_lshl_add_u32 v{vWr}, v{r_}, 6, v{vWr}")
        e(f"s_lshl_b32 s52, s{sRB}, 2", f"s_add_u32 s52, s52, s{sW}", "s_xor_b32 s53, s52, 1",
          f"s_lshl_b32 s54, s{sBLK}, 3", f"s_lshl_b32 s55, s{sCH}, 1", "s_add_u32 s54, s54, s55", "s_lshl_b32 s54, s54, 10",
          f"s_add_u32 s54, s54, {WS_H:#x}", f"s_add_u32 s54, s54, s{sKILL}",
          f"s_mul_i32 s{sHa}, s52, 114688", f"s_add_u32 s{sHa}, s{sHa}, s54",
          f"s_mul_i32 s{sHb}, s53, 114688", f"s_add_u32 s{sHb}, s{sHb}, s54",
          f"s_add_u32 s{sHa2}, s{sHa}, 4096", f"s_add_u32 s{sHb2}, s{sHb}, 4096")
        for i in range(4): e(f"v_mov_b32 v{vM+i}, 0x3f803f80")
        e(f"v_lshlrev_b32 v{x}, 9, v{vLane}", f"v_mov_b32 v{b_}, {OOB:#x}", f"v_cmp_gt_u32 vcc, 4, v{vLane}",
          f"s_lshl_b32 s54, s{sJ}, 17", "s_lshl_b32 s55, s52, 11", "s_add_u32 s54, s54, s55", f"s_add_u32 s54, s54, {WS_V:#x}",
          f"v_cndmask_b32 v{x}, v{b_}, v{x}, vcc")
        e(VM(f"buffer_store_dwordx4 {v(vM,4)}, v{x}, {srd(SWS)}, s54 offen offset:448 sc1"))
        e(f"s_cmp_ge_u32 s{sBLK}, 7", "s_cbranch_scc1 L_vaddr")
        e(f"v_mov_b32 v{vKVst}, v{vL16}",
          f"s_lshl_b32 s54, s{sBLK}, 1", f"s_add_u32 s54, s54, s{sCH}", "s_lshl_b32 s54, s54, 11",
          f"s_add_u32 s54, s54, {WS_K:#x}", f"s_add_u32 s54, s54, s{sKILL}",
          f"s_mul_i32 s{sKVa}, s52, 28672", f"s_add_u32 s{sKVa}, s{sKVa}, s54",
          f"s_mul_i32 s{sKVb}, s53, 28672", f"s_add_u32 s{sKVb}, s{sKVb}, s54",
          "s_branch L_kvaddr_done")
        e(L("L_vaddr"))
        def swap23(dst, src, t):
            return [f"v_and_b32 v{dst}, 0x13, v{src}", f"v_and_b32 v{t}, 4, v{src}", f"v_lshl_add_u32 v{dst}, v{t}, 1, v{dst}",
                    f"v_bfe_u32 v{t}, v{src}, 3, 1", f"v_lshl_add_u32 v{dst}, v{t}, 2, v{dst}"]
        cv, hv, d = vT + 3, vT + 4, vT + 5
        e(swap23(cv, m, x),
          f"s_sub_u32 s54, s{sBLK}, 7", "s_lshl_b32 s54, s54, 1", f"s_add_u32 s54, s54, s{sCH}", "s_lshl_b32 s54, s54, 5",
          f"v_add_u32 v{cv}, s54, v{cv}",
          f"v_mul_u32_u24 v{hv}, 2341, v{cv}", f"v_lshrrev_b32 v{hv}, 16, v{hv}",
          f"v_mul_u32_u24 v{d}, 28, v{hv}", f"v_sub_u32 v{d}, v{cv}, v{d}",
          swap23(cv, d, x),
          f"v_lshlrev_b32 v{vKVst}, 4, v{cv}", f"v_lshl_add_u32 v{vKVst}, v{hh}, 9, v{vKVst}",
          f"v_lshl_add_u32 v{vKVst}, v{hv}, 17, v{vKVst}",
          f"s_add_u32 s54, s{sKILL}, {WS_V:#x}",
          f"s_lshl_b32 s{sKVa}, s52, 11", f"s_add_u32 s{sKVa}, s{sKVa}, s54",
          f"s_lshl_b32 s{sKVb}, s53, 11", f"s_add_u32 s{sKVb}, s{sKVb}, s54")
        e(L("L_kvaddr_done"))
        e(DRAIN(vm=False))
        e(f"s_mul_i32 s52, s{sW}, 112",
          f"v_add_u32 v{vGa}, s52, v{vLane}",
          f"v_min_u32 v{vGa+1}, 47, v{vLane}", f"v_add3_u32 v{vGa+1}, v{vGa+1}, s52, 64",
          f"v_lshlrev_b32 v{x}, 1, v{vGa}", f"v_lshlrev_b32 v{b_}, 1, v{vGa+1}")
        self.gate_tok = [VM(f"buffer_load_ushort v{vGd}, v{x}, {srd(SG)}, 0 offen"),
                         VM(f"buffer_load_ushort v{vGd+1}, v{b_}, {srd(SG)}, 0 offen")]
        e(self.gate_tok)
        e(f"s_cmp_eq_u32 s{sOdd}, 0", "s_cselect_b32 s52, 56, 0", "s_add_u32 s52, s52, 0x20000",
          f"v_lshl_add_u32 v{vGa}, v{vGa}, 6, s52", f"v_lshl_add_u32 v{vGa+1}, v{vGa+1}, 6, s52",
          f"v_xor_b32 v{x}, 1, v{hh}", f"v_and_b32 v{x}, s{sOdd}, v{x}", f"v_add_u32 v{vMa}, -1, v{x}",
          f"s_xor_b32 s52, s{sOdd}, 1", f"v_and_b32 v{x}, s52, v{hh}", f"v_add_u32 v{vMb}, -1, v{x}",
          f"s_lshl_b32 s52, s{sRB}, 7", f"s_lshl_b32 s53, s{sJ}, 2", "s_add_u32 s52, s52, s53",
          f"v_mov_b32 v{x}, s52", f"v_mov_b32 v{b_}, {OOB:#x}", "v_cmp_eq_u32 vcc, 0, v0",
          f"v_mov_b32 v{vT+6}, 1",
          f"v_cndmask_b32 v{vFlag}, v{b_}, v{x}, vcc",
          f"v_cndmask_b32 v{x}, v{b_}, v0, vcc")
        e(self.stamp2())
        e(W(vm=self.ep_tok))
        e(self.stamp2())
        e(VM(f"buffer_atomic_add v{vT+6}, v{x}, {srd(SDBG)}, 0 offen"))
        e("s_mov_b32 s52, 0x9e3779b1", f"v_mul_lo_u32 v{vTag}, s52, v{vTag}", f"v_xor_b32 v{vTag}, 0x5bd1e995, v{vTag}")
        for t in range(2):
            for i in range(8):
                src = vPk + 8 * t + i
                e(f"v_lshlrev_b32 v{vBias+16*t+2*i}, 16, v{src}", f"v_and_b32 v{vBias+16*t+2*i+1}, 0xffff0000, v{src}")

    def chunk_dma(self, c):
        slot = (c % 5) * 32768
        o = []
        o.append(I(f"s_add_u32 m0, s{sLw}, {slot}"))
        toks = []
        for i in range(4):
            toks.append(VM(f"buffer_load_dwordx4 v{vXd+i}, {srd(SX)}, s{sXo} offen offset:{1024*i} lds")); o.append(toks[-1])
        o.append(I(f"s_add_u32 m0, s{sLw}, {slot+16384}"))
        o.append(I(f"s_add_u32 s{sXo}, s{sXo}, 128"))
        for i in range(2):
            toks.append(VM(f"buffer_load_dwordx4 v{vWa+i}, {srd(SWQ)}, s{sWao} offen offset:{1024*i} lds")); o.append(toks[-1])
        o.append(I(f"s_add_u32 m0, s{sLw}, {slot+16384+2048}"))
        o.append(I(f"s_add_u32 s{sWao}, s{sWao}, {64*2688}"))
        for i in range(2):
            toks.append(VM(f"buffer_load_dwordx4 v{vWb+i}, {srd(SW1)}, s{sWbo} offen offset:{1024*i} lds")); o.append(toks[-1])
        o.append(I(f"s_add_u32 s{sWbo}, s{sWbo}, {64*3584}"))
        self.ch_tok[c] = toks
        return o

    def w1b_dma(self, part):
        o = []; toks = []
        if part == 0:
            o += [I(f"s_mul_i32 s52, s{sW}, {64*3584}"), I(f"s_lshl_b32 s53, s{sBLK}, 8"), I("s_add_u32 s52, s52, s53"),
                  I("s_add_u32 s52, s52, 128"), I(f"s_lshl_b32 s53, s{sW}, 13"), I("s_add_u32 m0, s53, 0x10000")]
            n = 8
        else:
            o += [I(f"s_mul_i32 s52, s{sW}, {48*3584}"), I(f"s_lshl_b32 s53, s{sBLK}, 8"), I("s_add_u32 s52, s52, s53"),
                  I(f"s_add_u32 s52, s52, {128+256*3584}"), I(f"s_mul_i32 s53, s{sW}, 6144"), I("s_add_u32 m0, s53, 0x18000")]
            n = 6
        for i in range(n):
            if i == 4:
                o += [I("s_add_u32 m0, m0, 4096"), I(f"s_add_u32 s52, s52, {32*3584}")]
            toks.append(VM(f"buffer_load_dwordx4 v{vWb+i%4}, {srd(SW1)}, s52 offen offset:{1024*(i%4)} lds")); o.append(toks[-1])
        return o, toks

    def wq_dma(self):
        o = []; toks = []
        o += [I(f"s_mul_i32 s52, s{sW}, {112*2688}"), I(f"s_mul_i32 s53, s{sJ}, 56"), I("s_add_u32 s52, s52, s53"),
              I(f"s_lshl_b32 s53, s{sOdd}, 3"), I("s_sub_u32 s52, s52, s53"),
              I(f"s_mul_i32 s53, s{sW}, 7168"), I("s_add_u32 m0, s53, 0x20000")]
        for i in range(7):
            if i == 4:
                o += [I("s_add_u32 m0, m0, 4096"), I(f"s_add_u32 s52, s52, {64*2688}")]
            toks.append(VM(f"buffer_load_dwordx4 v{vWq+i%4}, {srd(SWQ)}, s52 offen offset:{1024*(i%4)} lds")); o.append(toks[-1])
        return o, toks

    def p1_reads(self, t):
        c, ks = divmod(t, 4)
        slot = (c % 5) * 32768
        off = slot & 0xffff
        wf = vWF + 8 * (t % 2)
        wo = off + 16384 + ks * 4096
        wa0 = LG(f"ds_read_b64_tr_b16 {v(wf,2)}, v{vWr} offset:{wo}")
        wa1 = LG(f"ds_read_b64_tr_b16 {v(wf+2,2)}, v{vWr} offset:{wo+512}")
        xa = LG(f"ds_read_b128 {a(8*t,4)}, v{vXr+ks} offset:{off}")
        xb = LG(f"ds_read_b128 {a(8*t+4,4)}, v{vXr+4+ks} offset:{off}")
        wb0 = LG(f"ds_read_b64_tr_b16 {v(wf+4,2)}, v{vWr} offset:{wo+2048}")
        wb1 = LG(f"ds_read_b64_tr_b16 {v(wf+6,2)}, v{vWr} offset:{wo+2048+512}")
        return [wa0, wa1, xa, xb, wb0, wb1]

    def rebase(self, delta):
        return [I(f"v_add_u32 v{r}, {delta & 0xffffffff:#x}, v{r}") for r in list(range(vXr, vXr + 8)) + [vWr]]

    def pass1(self, vtype):
        o = []
        rd = self.p1_first
        for t in range(28):
            c, ks = divmod(t, 4)
            wf = vWF + 8 * (t % 2)
            xa, xb = a(8 * t, 4), a(8 * t + 4, 4)
            def kv(acc, x):
                cc = "0" if t == 0 else v(acc, 16)
                return I(f"{MF} {v(acc,16)}, {x}, {v(wf,4)}, {cc}") if vtype else I(f"{MF} {v(acc,16)}, {v(wf,4)}, {x}, {cc}")
            def hh(acc, x):
                cc = v(vBias, 16) if t == 0 else v(acc, 16)
                return I(f"{MF} {v(acc,16)}, {v(wf+4,4)}, {x}, {cc}")
            nxt = None
            pre = []
            extra = []
            if t < 27:
                if ks == 3:
                    pre = [W(vm=self.ch_tok[c + 1]), I("s_barrier")]
                    nc = c + 1
                    if nc in (2, 4): pre = self.rebase(0x10000) + pre
                    if nc == 5: pre = self.rebase(-0x20000) + pre
                nxt = self.p1_reads(t + 1)
            else:
                pre = [I(f"v_add_u32 v{vWr}, 0x10000, v{vWr}"), W(vm=self.w1b_tok0), I("s_barrier")]
                nxt = self.p2a_reads(0) + self.p2a_reads(1)
            if ks == 0 and c >= 1:
                if c - 1 + 5 <= 6: self.pend = self.chunk_dma(c + 4)
                elif c == 3:
                    self.pend, self.w1b_tok0 = self.w1b_dma(0)
                else: self.pend = []
            take = []
            if c >= 1 and ks < 3:
                n = (len(self.pend) + (2 - ks)) // (3 - ks)
                take, self.pend = self.pend[:n], self.pend[n:]
            h = (len(take) + 1) // 2
            if ks == 3 or t == 27:
                o += [W(lg=rd), kv(aKV, xa)] + pre + nxt[:2] + [kv(aKV + 16, xb)] + nxt[2:4] + [hh(aH, xa)] + nxt[4:] + [hh(aH + 16, xb)]
            else:
                o += [W(lg=rd[:3]), kv(aKV, xa)] + nxt[:3] + [W(lg=rd[:4]), kv(aKV + 16, xb)] + nxt[3:] + \
                     [W(lg=rd), hh(aH, xa)] + take[:h] + [hh(aH + 16, xb)] + take[h:]
            rd = nxt
        self.p2a_first = rd
        return o

    def p2a_reads(self, t):
        wf = vWF + 16 + 4 * (t % 4)
        return [LG(f"ds_read_b64_tr_b16 {v(wf,2)}, v{vWr} offset:{t*2048}"),
                LG(f"ds_read_b64_tr_b16 {v(wf+2,2)}, v{vWr} offset:{t*2048+512}")]

    def p2b_reads(self, t):
        wf = vWF + 4 * (t % 4)
        return [LG(f"ds_read_b64_tr_b16 {v(wf,2)}, v{vQr} offset:{t*1024}"),
                LG(f"ds_read_b64_tr_b16 {v(wf+2,2)}, v{vQr} offset:{t*1024+256}")]

    def mish(self, acc, pk):
        o = []
        for g in range(4):
            hs = [acc + 4 * g + i for i in range(4)]
            tm = [vM + 8 * (g % 2) + i for i in range(4)]
            t2 = [vM + 8 * (g % 2) + 4 + i for i in range(4)]
            o += [I(f"v_mul_f32 v{tm[i]}, {LOG2E:#x}, v{hs[i]}") for i in range(4)]
            o += [I(f"v_exp_f32 v{tm[i]}, v{tm[i]}") for i in range(4)]
            o += [I(f"v_fma_f32 v{t2[i]}, v{tm[i]}, 0.5, 1.0") for i in range(4)]
            o += [I(f"v_fma_f32 v{t2[i]}, v{tm[i]}, v{t2[i]}, 1.0") for i in range(4)]
            o += [I(f"v_rcp_f32 v{t2[i]}, v{t2[i]}") for i in range(4)]
            o += [I(f"v_fma_f32 v{hs[i]}, -v{hs[i]}, v{t2[i]}, v{hs[i]}") for i in range(4)]
            o += [I(f"v_cvt_pk_bf16_f32 v{pk+2*g+i}, v{hs[2*i]}, v{hs[2*i+1]}") for i in range(2)]
        return o

    def store2(self, pk, voff, soff):
        return [VM(f"buffer_store_dwordx4 {v(pk+4*i,4)}, v{voff}, {srd(SWS)}, s{soff} offen offset:{1024*i} sc1") for i in range(2)]

    def pass2(self):
        e = self.e
        rds = {0: self.p2a_first[:2], 1: self.p2a_first[2:]}
        def mains2a(t0, t1, last):
            ms = []
            for t in range(t0, t1):
                wf = vWF + 16 + 4 * (t % 4)
                nx = []
                if t + 2 < last:
                    rds[t + 2] = self.p2a_reads(t + 2); nx = rds[t + 2]
                cc = lambda acc: (v(vBias + 16, 16) if t == 0 else v(acc, 16))
                ms.append([W(lg=rds[t]), I(f"{MF} {v(aH+32,16)}, {v(wf,4)}, {a(8*t,4)}, {cc(aH+32)}")] + nx)
                ms.append([I(f"{MF} {v(aH+48,16)}, {v(wf,4)}, {a(8*t+4,4)}, {cc(aH+48)}")])
            return ms
        dm1, w1b_tok1 = self.w1b_dma(1)
        dm2, wq_tok = self.wq_dma()
        kvp = []
        for tl in range(2):
            acc = aKV + 16 * tl
            kvp += [I(f"v_cvt_pk_bf16_f32 v{acc+i}, v{acc+2*i}, v{acc+2*i+1}") for i in range(8)]
            kvp += self.store2(acc, vKVst, sKVa + tl)
        m0 = self.mish(aH, vPk); m1 = self.mish(aH + 16, vPk + 8)
        split = len(m1) // 4
        e(self.stamp())
        e(interleave(mains2a(0, 16, 16), kvp + dm1 + dm2 + m0 + m1[:split]))
        e(DRAIN(lg=False))
        gw = [LG(f"ds_write_b16 v{vGa+i}, v{vGd+i}") for i in range(2)]
        e(gw, W(lg=gw), "s_barrier")
        e(VM(f"buffer_store_dword v{vTag}, v{vFlag}, {srd(SWS)}, s{self.flag_s(0)} offen sc1"))
        e(self.stamp())
        rds[16] = self.p2a_reads(16); rds[17] = self.p2a_reads(17)
        e(rds[16], rds[17])
        qr = {0: self.p2b_reads(0), 1: self.p2b_reads(1), 2: self.p2b_reads(2)}
        e(interleave(mains2a(16, 28, 28), self.store2(vPk, vL16, sHa) + m1[split:] + self.store2(vPk + 8, vL16, sHb) + qr[0] + qr[1] + qr[2]))
        e(self.stamp2())
        ms = []
        for t in range(28):
            wf = vWF + 4 * (t % 4)
            nx = []
            if t + 3 < 28:
                qr[t + 3] = self.p2b_reads(t + 3); nx = qr[t + 3]
            cc = "0" if t == 0 else v(aQ, 16)
            ms.append([W(lg=qr[t]), I(f"{MF} {v(aQ,16)}, {v(wf,4)}, {a(8*t,4)}, {cc}")] + nx)
        m2 = self.mish(aH + 32, vPk); m3 = self.mish(aH + 48, vPk + 8)
        keep = 26
        fill = m2 + self.store2(vPk, vL16, sHa2) + m3[:-keep]
        e(ms[0], ms[1], ms[2])
        e(interleave(ms[3:], fill))
        e(m3[-keep:], self.store2(vPk + 8, vL16, sHb2))
        e(self.stamp())

    def flag_s(self, kind):
        self.e(f"s_mov_b32 s{sT3}, {WS_FLAG+kind*4096:#x}")
        return sT3

    def qfin(self):
        e = self.e
        QX = 0x7000
        GX = 0x9000
        aQf = 224
        t = vT
        e(f"s_cmp_eq_u32 s{sOdd}, 0", f"s_cselect_b64 s[{sMask}:{sMask+1}], -1, 0",
          f"v_mov_b32 v{t}, v{aQ}", f"v_mov_b32 v{t+1}, v{aQ}",
          f"v_mov_b32 v{t+2}, v{aQ+12}", f"v_mov_b32 v{t+3}, v{aQ+12}")
        for i in range(16): e(f"v_mul_f32 v{aQ+i}, {QSCALE:#x}, v{aQ+i}")
        e(f"v_permlane32_swap_b32 v{t}, v{t+1}",
          f"v_permlane32_swap_b32 v{t+2}, v{t+3}")
        for i in range(8): e(f"v_cvt_pk_bf16_f32 v{aQ+i}, v{aQ+2*i}, v{aQ+2*i+1}")
        e(f"v_cndmask_b32 v{t}, v{t}, v{t+3}, s[{sMask}:{sMask+1}]",
          f"v_and_b32 v{aQ}, v{vMa}, v{aQ}", f"v_and_b32 v{aQ+1}, v{vMa}, v{aQ+1}",
          f"v_and_b32 v{aQ+6}, v{vMb}, v{aQ+6}", f"v_and_b32 v{aQ+7}, v{vMb}, v{aQ+7}",
          f"v_mul_f32 v{t}, {f2u(-math.log2(math.e)):#x}, v{t}",
          f"s_lshl_b32 s52, s{sW}, 11", f"s_add_u32 s52, s52, {QX:#x}",
          f"v_exp_f32 v{t}, v{t}",
          f"v_add_u32 v{t+1}, s52, v{vL16}")
        w0 = LG(f"ds_write_b128 v{t+1}, {v(aQ,4)}"); w1 = LG(f"ds_write_b128 v{t+1}, {v(aQ+4,4)} offset:1024")
        e(w0, w1)
        e(f"v_add_f32 v{t+2}, 1.0, v{t}", f"v_rcp_f32 v{vG}, v{t+2}",
          f"s_lshl_b32 s52, s{sW}, 7", f"s_add_u32 s52, s52, {GX:#x}",
          f"v_and_b32 v{t+3}, 31, v{vLane}", f"v_lshlrev_b32 v{t+3}, 2, v{t+3}",
          f"v_sub_f32 v{t+2}, 1.0, v{vG}",
          f"v_add_u32 v{t+4}, s52, v{t+3}")
        w2 = LG(f"ds_write_b32 v{t+4}, v{t+2}")
        e(w2)
        for i in range(8): e(f"v_accvgpr_write_b32 a{aQf+i}, v{aQ+i}")
        e(W(lg=w2), "s_barrier")
        self.q_tok = []
        for i in range(1, 4):
            e(f"s_add_u32 s52, s{sW}, {i}", "s_and_b32 s52, s52, 3", "s_lshl_b32 s52, s52, 11", f"s_add_u32 s52, s52, {QX:#x}",
              f"v_add_u32 v{t+1}, s52, v{vL16}")
            for sidx in range(2):
                r = LG(f"ds_read_b128 {a(aQf+8*i+4*sidx,4)}, v{t+1} offset:{1024*sidx}")
                self.q_tok.append(r); e(r)
        e(f"s_lshr_b32 s52, s{sJ}, 3", "s_lshl_b32 s52, s52, 1", f"s_lshr_b32 s53, s{sW}, 1", "s_add_u32 s52, s52, s53",
          "s_lshl_b32 s52, s52, 7", f"s_add_u32 s52, s52, {GX:#x}",
          f"v_add_u32 v{t+4}, s52, v{t+3}", f"v_xor_b32 v{t+5}, 128, v{t+4}")
        r0 = LG(f"ds_read_b32 v{vG1}, v{t+4}"); r1 = LG(f"ds_read_b32 v{vG1+1}, v{t+5}")
        e(r0, r1); self.q_tok += [r0, r1]

    def dump_q(self):
        e = self.e
        e(W(lg=self.q_tok))
        e(f"s_lshl_b32 s52, s{sRB}, 4", f"s_add_u32 s52, s52, s{sJ}", "s_lshl_b32 s52, s52, 2", f"s_add_u32 s52, s52, s{sW}",
          "s_mul_i32 s52, s52, 0x2400", f"s_add_u32 s52, s52, {WS_DIAG+0x100000:#x}")
        for i in range(4):
            for sidx in range(2):
                e(VM(f"buffer_store_dwordx4 {a(224+8*i+4*sidx,4)}, v{vL16}, {srd(SWS)}, s52 offen offset:{1024*sidx}"))
            e("s_add_u32 s52, s52, 2048")
        e(f"v_mov_b32 v{vG+3}, v{vTag}")
        e(VM(f"buffer_store_dwordx4 {v(vG,4)}, v{vL16}, {srd(SWS)}, s52 offen"))

    def finish(self):
        e = self.e
        if self.diag:
            e(self.stamp(), DRAIN())
            e("s_lshl_b32 s52, s2, 2", f"s_add_u32 s52, s52, s{sW}", "s_lshl_b32 s52, s52, 7", f"s_add_u32 s52, s52, {WS_DIAG:#x}")
            e(f"v_mov_b32 v{vT}, 0", f"v_mov_b32 v{vT+1}, s76")
            e(VM(f"buffer_store_dword v{vT+1}, v{vT}, {srd(SWS)}, s52 offen"))
            for i in range(self.nst):
                e(f"s_sub_u32 s53, s{sST+2*i}, s{sST}", f"v_mov_b32 v{vT+2+i%4}, s53")
                e(VM(f"buffer_store_dword v{vT+2+i%4}, v{vT}, {srd(SWS)}, s52 offen offset:{4+4*i}"))
        e(f"s_or_b32 s52, s2, s{sW}", "s_cmp_lg_u32 s52, 0", "s_cbranch_scc1 L_end")
        e(f"s_mov_b32 s{sSpin}, 0x40000", L("L_bump"))
        e(VM(f"buffer_load_dword v{vT}, off, {srd(SDBG)}, 0 sc1"), VM(f"buffer_load_dword v{vT+1}, off, {srd(SWS)}, 0 sc1"), DRAIN(lg=False))
        e(f"v_readfirstlane_b32 s52, v{vT}", f"s_sub_u32 s{sSpin}, s{sSpin}, 1", "s_cbranch_scc1 L_end",
          "s_cmp_lt_u32 s52, 0x100", "s_cbranch_scc1 L_bump")
        e(f"v_add_u32 v{vT+1}, 1, v{vT+1}", "s_mov_b64 exec, 1")
        e(VM(f"buffer_store_dword v{vT+1}, off, {srd(SWS)}, 0 sc1"))
        e(L("L_end"), "s_endpgm")
        if self.tail: self.tail(self)

    def build(self):
        e = self.e
        self.prologue()
        e(W(vm=self.ch_tok[0]), "s_barrier")
        e(self.stamp())
        self.p1_first = self.p1_reads(0)
        e(self.p1_first)
        e(f"s_cmp_ge_u32 s{sBLK}, 7", "s_cbranch_scc1 L_p1v")
        e(FORK())
        first = self.p1_first; ct = dict(self.ch_tok)
        e(self.pass1(False), "s_branch L_p1done")
        keep = (self.p2a_first, self.w1b_tok0)
        e(ALT(), L("L_p1v"))
        self.ch_tok = ct
        e(self.pass1(True))
        e(JOIN(), L("L_p1done"))
        self.pass2()
        self.qfin()
        if self.stop == "p1":
            self.dump_q()
            self.finish(); return
        import gen2
        gen2.attention(self)
        if self.stop == "attn":
            self.finish(); return
        gen2.fin(self)
        self.finish()

    def lines(self):
        items = finalize(self.ops)
        self._lines = hazard_pass(items)

    def text(self, code_lines):
        lines = self._lines
        hdr = open(os.path.join(os.path.dirname(os.path.abspath(__file__)), "..", "cdna_kernels", NAME + ".s.ref")).read().split("\n")
        head = [l for l in hdr if l.startswith(";") and "@launch" not in l]
        out = head + ["; @launch grid=(256,1,1) block=(256,1,1) lds=163840",
                      '.amdgcn_target "amdgcn-amd-amdhsa--gfx950"', ".text",
                      f".globl {NAME}_kernel", ".p2align 8", f".type {NAME}_kernel,@function",
                      f".set CODE_LINES, {code_lines}",
                      f".set CODE_LINES_PER_WG, {(code_lines+31)//32}",
                      f"{NAME}_kernel:"]
        out += lines
        out += ["L_code_end:", '.section .rodata,"a"', ".p2align 6", f".amdhsa_kernel {NAME}_kernel",
                "  .amdhsa_next_free_vgpr 512", "  .amdhsa_next_free_sgpr 102", "  .amdhsa_accum_offset 256",
                "  .amdhsa_group_segment_fixed_size 0", "  .amdhsa_kernarg_size 88", "  .amdhsa_user_sgpr_count 2",
                "  .amdhsa_user_sgpr_kernarg_segment_ptr 1", "  .amdhsa_system_sgpr_workgroup_id_x 1", ".end_amdhsa_kernel", ""]
        return "\n".join(out)

if __name__ == "__main__":
    ap = argparse.ArgumentParser()
    ap.add_argument("-o", default=None)
    ap.add_argument("--diag", type=int, default=0)
    ap.add_argument("--stop", default=None)
    args = ap.parse_args()
    g = Gen(diag=args.diag, stop=args.stop)
    g.build()
    g.lines()
    path = args.o or os.path.join(os.path.dirname(os.path.abspath(__file__)), "..", "cdna_kernels", NAME + ".s")
    import subprocess
    cl = 100
    for it in range(2):
        t = g.text(cl)
        open(path, "w").write(t)
        r = subprocess.run(["clang", "-x", "assembler", "-target", "amdgcn-amd-amdhsa", "-mcpu=gfx950", "-c", path, "-o", "gen_tmp.o"], capture_output=True, text=True)
        assert r.returncode == 0, r.stderr[:3000]
        nm = subprocess.run(["llvm-objdump", "-t", "gen_tmp.o"], capture_output=True, text=True).stdout
        size = [int(l.split()[0], 16) for l in nm.splitlines() if l.endswith(" L_code_end")][0]
        cl = size // 128
    print("wrote", path, len(t), "bytes; code", size, "bytes")
```
